```python
import torch

def _softmax(x, axis=-1):
    return torch.softmax(x, dim=axis)

def _gelu(x):
    return torch.nn.functional.gelu(x, approximate='tanh')

def _silu(x):
    return torch.nn.functional.silu(x)

def _sigmoid(x):
    return torch.sigmoid(x)

def _layernorm(x, axis=-1, eps=1e-05):
    m = x.mean(dim=axis, keepdim=True)
    v = x.var(dim=axis, keepdim=True, unbiased=False)
    return (x - m) / torch.sqrt(v + eps)

def _scatter_add(tgt, idx, src, axis=0):
    return tgt.clone().index_add_(axis, idx, src)

def _segment_sum(src, seg, n):
    out = torch.zeros((n,) + src.shape[1:], dtype=src.dtype)
    return out.index_add_(0, seg, src)

def _pad(x, pw):
    flat = tuple((v for pair in reversed(pw) for v in pair))
    return torch.nn.functional.pad(x, flat)
kernel_name = 'adaLN_cond__sliding_block_cached__dense_activation_silu__decode'

def setup_inputs():

    _w = lambda a: (lambda t: t.to(torch.bfloat16) if t.is_floating_point() else t)(torch.as_tensor(a))

    def _A_setup():
        B, Sq, D = (1, 1, 1024)
        Hq, Hkv, Sk, Dh = (32, 4, 65536, 128)
        assert Hq % Hkv == 0, (Hq, Hkv)
        return {'x': _w((lambda *s: torch.randn(*s, dtype=torch.bfloat16) * 0.1)(B, Sq, D)), 'k_cache': _w((lambda *s: torch.randn(*s, dtype=torch.bfloat16) * 0.8)(B, Hkv, Sk, Dh)), 'v_cache': _w((lambda *s: torch.randn(*s, dtype=torch.bfloat16) * 3.2)(B, Hkv, Sk, Dh)), 'wq': _w((lambda *s: torch.randn(*s, dtype=torch.bfloat16) * 0.8)(D, Hq * Dh) * D ** (-0.5)), 'wo': _w((lambda *s: torch.randn(*s, dtype=torch.bfloat16) * 3.2)(Hq * Dh, D) * (Hq * Dh) ** (-0.5))}
    _A_in = _A_setup()

    def _B_setup():
        B, S, D, F = (1, 1, 1024, 3584)
        return {'x': _w((lambda *s: torch.randn(*s, dtype=torch.bfloat16) * 0.1)(B, S, D)), 'w1': _w((lambda *s: torch.randn(*s, dtype=torch.bfloat16) * 3.2)(D, F) * D ** (-0.5)), 'w2': _w((lambda *s: torch.randn(*s, dtype=torch.bfloat16) * 3.2)(F, D) * F ** (-0.5))}
    _B_in = _B_setup()
    return {'A_x': _A_in['x'], 'A_k_cache': _A_in['k_cache'], 'A_v_cache': _A_in['v_cache'], 'A_wq': _A_in['wq'], 'A_wo': _A_in['wo'], 'B_x': _B_in['x'], 'B_w1': _B_in['w1'], 'B_w2': _B_in['w2'], 'c': _w((lambda *s: torch.randn(*s, dtype=torch.bfloat16) * 0.4)(1, 1024) * 8.0), 'w_mod': _w((lambda *s: torch.randn(*s, dtype=torch.bfloat16) * 0.4)(1024, 6 * 1024) * 1024 ** (-0.5) * 8.0)}

def reference(A_x, A_k_cache, A_v_cache, A_wq, A_wo, B_x, B_w1, B_w2, c, w_mod):

    def _A_ref(x, k_cache, v_cache, wq, wo):
        B, Sq, D = x.shape
        Hq, Dh = (32, 128)
        Hkv, Sk = (k_cache.shape[1], k_cache.shape[2])
        W = min(4096, max(256, Sk // 4))
        rep = Hq // Hkv
        q = (lambda x, *d: x.permute(*d))((x @ wq).reshape(B, Sq, Hq, Dh), 0, 2, 1, 3)
        k = (lambda x, n, axis: torch.repeat_interleave(x, n, dim=axis))(k_cache[:, :, Sk - W:, :], rep, axis=1)
        v = (lambda x, n, axis: torch.repeat_interleave(x, n, dim=axis))(v_cache[:, :, Sk - W:, :], rep, axis=1)
        scores = torch.einsum('bhqd,bhkd->bhqk', q, k) * Dh ** (-0.5)
        p = _softmax(scores, axis=-1)
        o = torch.einsum('bhqk,bhkd->bhqd', p, v)
        return (lambda x, *d: x.permute(*d))(o, 0, 2, 1, 3).reshape(B, Sq, Hq * Dh) @ wo

    def _B_ref(x, w1, w2):
        h = torch.einsum('bsd,df->bsf', x, w1)
        h = _silu(h)
        out = torch.einsum('bsf,fd->bsd', h, w2)
        return out
    x = A_x
    mod = (_silu(c) @ w_mod).reshape(c.shape[0], 6, 1, -1)
    sa, ca, ga, sb, cb, gb = (mod[:, 0].clone(), mod[:, 1].clone(), mod[:, 2].clone(), mod[:, 3].clone(), mod[:, 4].clone(), mod[:, 5].clone())
    h = _layernorm(x, axis=-1) * (1 + ca) + sa
    x = x + ga * _A_ref(h, A_k_cache, A_v_cache, A_wq, A_wo)
    h = _layernorm(x, axis=-1) * (1 + cb) + sb
    x = x + gb * _B_ref(h, B_w1, B_w2)
    return x
```

```python
KNAME = 'adaLN_cond__sliding_block_cached__dense_activation_silu__decode_kernel'
HEADER_COMMENT = open('adaLN_cond__sliding_block_cached__dense_activation_silu__decode.s.ref').read().split('; Override')[0]
KA = dict(x=0, k=8, v=16, wq=24, wo=32, bx=40, w1=48, w2=56, c=64, wmod=72, out=80, dbg=88, ws=96)
SIZES = dict(x=2048, k=4*65536*256, v=4*65536*256, wq=1024*8192, wo=4096*2048, bx=2048, w1=1024*7168, w2=3584*2048, c=2048, wmod=1024*12288, out=2048, dbg=256, ws=268435456)

class Asm:
    def __init__(self):
        self.lines = []
        self.nlabel = 0
    def __call__(self, s):
        for l in s.strip('\n').split('\n'):
            self.lines.append('    ' + l.strip() if not l.strip().endswith(':') else l.strip())
    def label(self, base='L'):
        self.nlabel += 1
        return f'{base}_{self.nlabel}'
    def text(self):
        return '\n'.join(self.lines) + '\n'

def wrap(body, grid, block, lds, vgpr, sgpr=102, accum=None, name=KNAME):
    if accum is None: accum = min(256, (vgpr + 3) // 4 * 4)
    return (HEADER_COMMENT + f'; @launch grid=({grid},1,1) block=({block},1,1) lds={lds}\n'
        '.amdgcn_target "amdgcn-amd-amdhsa--gfx950"\n.text\n'
        f'.globl {name}\n.p2align 8\n.type {name},@function\n{name}:\n' + body +
        '.section .rodata,"a"\n.p2align 6\n'
        f'.amdhsa_kernel {name}\n  .amdhsa_next_free_vgpr {vgpr}\n  .amdhsa_next_free_sgpr {sgpr}\n  .amdhsa_accum_offset {accum}\n'
        '  .amdhsa_group_segment_fixed_size 0\n  .amdhsa_kernarg_size 104\n  .amdhsa_user_sgpr_count 2\n'
        '  .amdhsa_user_sgpr_kernarg_segment_ptr 1\n  .amdhsa_system_sgpr_workgroup_id_x 1\n.end_amdhsa_kernel\n')
```

```python
import re
TRANS = ('v_exp_', 'v_log_', 'v_rcp_', 'v_rsq_', 'v_sqrt_', 'v_sin_', 'v_cos_')
REG = re.compile(r'\b([vsa])\[(\d+):(\d+)\]|\b([vsa])(\d+)\b|\b(vcc|exec|m0|scc)\b')
def regs(op):
    out = set()
    for m in REG.finditer(op):
        if m.group(1):
            for i in range(int(m.group(2)), int(m.group(3)) + 1): out.add(m.group(1) + str(i))
        elif m.group(4): out.add(m.group(4) + m.group(5))
        else: out.add(m.group(6))
    return out
def split_ops(s):
    ops = []; depth = 0; cur = ''
    for ch in s:
        if ch == '[': depth += 1
        if ch == ']': depth -= 1
        if ch == ',' and depth == 0: ops.append(cur.strip()); cur = ''
        else: cur += ch
    if cur.strip(): ops.append(cur.strip())
    return ops
class Ins:
    def __init__(self, text):
        self.text = text
        t = text.split(';')[0].strip()
        parts = t.split(None, 1)
        self.op = op = parts[0]
        ops = split_ops(parts[1]) if len(parts) > 1 else []
        self.ops = ops
        self.dst = set(); self.src = set(); self.srcC = set(); self.srcAB = set(); self.data = set()
        self.mfma = op.startswith('v_mfma')
        self.valu = op.startswith('v_') and not self.mfma
        self.trans = op.startswith(TRANS)
        self.dpp = '_dpp' in op or 'row_' in t or 'quad_perm' in t
        self.perml = op.startswith('v_permlane')
        self.rdlane = op.startswith(('v_readlane', 'v_readfirstlane'))
        self.vmem = op.startswith(('buffer_', 'global_'))
        self.ds = op.startswith('ds_')
        self.salu = op.startswith('s_')
        self.ldsdma = self.vmem and re.search(r'\blds\b', t) is not None
        self.store = (self.vmem and 'store' in op) or (self.ds and 'write' in op)
        self.wide_store = self.vmem and 'store' in op and ('x3' in op or 'x4' in op)
        self.states = 1
        if op == 's_nop': self.states = int(ops[0]) + 1
        if self.mfma:
            self.dst = regs(ops[0]); self.srcAB = regs(ops[1]) | regs(ops[2]); self.srcC = regs(ops[3]); self.src = self.srcAB | self.srcC
            self.passes = 8 if '32x32' in op else 4
        elif self.valu:
            self.dst = regs(ops[0])
            rest = ops[1:]
            if op.startswith(('v_add_co', 'v_sub_co', 'v_addc_co', 'v_subb_co')):
                self.dst |= regs(ops[1]); rest = ops[2:]
            for o in rest: self.src |= regs(o)
            if self.perml: self.dst |= regs(ops[1]); self.src |= regs(ops[0])
            if op.startswith(('v_fmac', 'v_dot2c', 'v_writelane')) or self.dpp: self.src |= regs(ops[0])
            if op.startswith('v_cndmask') and len(ops) == 3: self.src.add('vcc')
        elif self.vmem or self.ds:
            if self.store or self.ldsdma:
                for o in ops: self.src |= regs(o)
                if self.vmem and self.store:
                    self.data = regs(ops[0]) if op.startswith('buffer_') else regs(ops[1])
            else:
                self.dst = regs(ops[0])
                for o in ops[1:]: self.src |= regs(o)
            if self.ldsdma: self.src.add('m0')
        elif self.salu:
            if op.startswith(('s_cmp', 's_bitcmp', 's_cbranch', 's_branch', 's_waitcnt', 's_barrier', 's_nop', 's_sleep', 's_setprio', 's_endpgm')):
                for o in ops: self.src |= regs(o)
            else:
                self.dst = regs(ops[0]) if ops else set()
                for o in ops[1:]: self.src |= regs(o)
def isv(r): return r[0] in 'va' and r != 'vcc'
def need(p, c):
    n = 0
    pv = {r for r in p.dst if isv(r)}; ps = {r for r in p.dst if not isv(r)}
    if p.valu:
        if c.mfma and pv & c.src: n = max(n, 2)
        if c.valu and (c.dpp or c.perml) and pv & c.src: n = max(n, 2)
        if c.rdlane and pv & c.src: n = max(n, 1)
        if p.trans and (c.valu or c.mfma or c.vmem or c.ds) and pv & c.src: n = max(n, 1)
        if ps:
            if c.valu and ps & c.src: n = max(n, 4 if c.op.startswith(('v_readlane', 'v_writelane')) else 2)
            if c.vmem and ps & c.src: n = max(n, 5)
            if c.salu and ps & c.src: n = max(n, 1)
    if p.mfma:
        big = {4: 8, 8: 12}[p.passes]
        if c.valu and (pv & (c.src | c.dst)): n = max(n, big)
        if (c.vmem or c.ds) and (pv & (c.src | c.dst)): n = max(n, big)
        if c.mfma:
            if pv & c.srcAB: n = max(n, big)
            if pv & c.srcC and pv != c.srcC: n = max(n, {4: 6, 8: 10}[p.passes])
        if c.valu and p.srcC & c.dst: n = max(n, {4: 3, 8: 7}[p.passes])
    if p.wide_store and (c.valu or c.mfma) and p.data & c.dst: n = max(n, 2)
    if p.wide_store and p.data & c.dst: n = max(n, 1)
    if p.salu and 'm0' in p.dst and (c.ldsdma or 'm0' in c.src and c.valu): n = max(n, 1)
    return n
class HAsm:
    def __init__(self):
        self.lines = []; self.hist = []; self.nlabel = 0; self.nops = 0
    def __call__(self, s):
        for l in s.strip('\n').split('\n'):
            l = l.strip()
            if not l: continue
            if l.startswith(';') or l.startswith('.'):
                self.lines.append(l); continue
            if l.endswith(':'):
                self.lines.append(l); continue
            ins = Ins(l)
            gap = 0; add = 0
            for p in reversed(self.hist[-24:]):
                add = max(add, need(p, ins) - gap)
                gap += p.states
                if gap >= 20: break
            while add > 0:
                k = min(add, 16)
                nop = Ins(f's_nop {k-1}'); self.hist.append(nop); self.lines.append(f'    s_nop {k-1}'); add -= k; self.nops += 1
            self.hist.append(ins); self.lines.append('    ' + l)
            if ins.op in ('s_branch', 's_endpgm'): self.hist = []
    def label(self, base='L'):
        self.nlabel += 1
        return f'{base}_{self.nlabel}'
    def text(self): return '\n'.join(self.lines) + '\n'
```

```python
import sys
from asmlib import KNAME, HEADER_COMMENT, KA, SIZES, wrap
from haz import HAsm

EPOCH = 0
FLAGS = 0x1000
E1L = 0x10000; E1G = 0x20000
CLR0 = 0x100000
Q = CLR0
O = Q + 0x10000
LAM = O + 0x40000
H = LAM + 0x10000
STAT = H + 24 * 7168
LOC = STAT + 1024
MODP_O = 0; MODV_O = 16384; E4_O = MODV_O + 2048; E6_O = E4_O + 16384; LOCX = E6_O + 8192
GOFF = 8 * LOCX
assert LOC + 2 * GOFF <= CLR0 + 256 * 5120
DBG = 0x400000
QL = 65536; QLS = 272
OW = QL + 8 * QLS; OWS = 528
ML = OW + 4 * 8 * OWS
LDS_BYTES = ML + 256
LOG2E = 1.4426950408889634
import struct
def f2u(f): return struct.unpack('<I', struct.pack('<f', f))[0]
MAXIT = 30000

P = {k: 64 + v // 4 for k, v in KA.items()}
WS = 's[8:11]'; WT = 's[12:15]'; WT2 = 's[16:19]'
sW, sX, sM, sTAG = 's3', 's4', 's5', 's6'

def gen(diag=False, kv_wait=True, light_sleep=1):
    a = HAsm()
    nstamp = [0]
    def stamp(k):
        if diag: a(f's_memrealtime s[{40+2*k}:{41+2*k}]')
    def srd(name, base):
        a(f's_mov_b32 s{base}, s{P[name]}'); a(f's_mov_b32 s{base+1}, s{P[name]+1}')
        a(f's_mov_b32 s{base+2}, {SIZES[name]}'); a(f's_mov_b32 s{base+3}, 0x20000')
    def vr(b, n=4): return f'v[{b}:{b+n-1}]' if n > 1 else f'v{b}'
    DPP = 'row_mask:0xf bank_mask:0xf'
    def allred_rows(op, v, t):
        a(f'v_mov_b32 v{t}, v{v}'); a(f'v_permlane16_swap_b32 v{v}, v{t}'); a(f'{op} v{v}, v{v}, v{t}')
        a(f'v_mov_b32 v{t}, v{v}'); a(f'v_permlane32_swap_b32 v{v}, v{t}'); a(f'{op} v{v}, v{v}, v{t}')
    def allred_dpp(op, vs, steps):
        pats = ['quad_perm:[1,0,3,2]', 'quad_perm:[2,3,0,1]', 'row_half_mirror', 'row_mirror'][:steps]
        for p in pats:
            for v in vs: a(f'{op}_dpp v{v}, v{v}, v{v} {p} {DPP}')
    def mfma(d, A, B, c=None):
        a(f'v_mfma_f32_16x16x32_bf16 {vr(d)}, {vr(A)}, {vr(B)}, {vr(d) if c is None else c}')
    WID = {1: 'dword', 2: 'dwordx2', 4: 'dwordx4'}
    def issue(loads, sB):
        cur = None
        for (d, n, voff, const) in loads:
            hi = const // 4096 * 4096
            if hi == 0: sb = sB
            else:
                if cur != hi: a(f's_add_u32 s22, {sB}, {hi}'); cur = hi
                sb = 's22'
            off = f' offset:{const - hi}' if const - hi else ''
            a(f'buffer_load_{WID[n]} {vr(d, n)}, v{voff}, {WS}, {sb} offen{off} sc1')
    def maxchain(regs, t):
        regs = list(regs)
        if len(regs) == 1: return regs[0]
        if len(regs) == 2: a(f'v_max_u32 v{t}, v{regs[0]}, v{regs[1]}'); return t
        a(f'v_max3_u32 v{t}, v{regs[0]}, v{regs[1]}, v{regs[2]}'); regs = regs[3:]
        while regs:
            if len(regs) >= 2: a(f'v_max3_u32 v{t}, v{t}, v{regs[0]}, v{regs[1]}'); regs = regs[2:]
            else: a(f'v_max_u32 v{t}, v{t}, v{regs[0]}'); regs = []
        return t
    def selbase(sL, local):
        if local:
            a('s_and_b32 s21, s20, 15'); a('s_cmp_eq_u32 s21, 15'); a(f's_cselect_b32 s21, {GOFF if local is True else local}, 0'); a(f's_add_u32 s21, s21, {sL}')
            return 's21'
        return sL
    def poll(loads, sL, local, t, light=True, extra=None, check=None):
        a('s_mov_b32 s20, 0')
        if light:
            L = a.label('lt'); K = a.label('ltok')
            a(f'{L}:')
            b = selbase(sL, local)
            issue(loads[:1], b)
            a('s_waitcnt vmcnt(0)')
            a(f'v_cmp_ne_u32 vcc, -1, v{loads[0][0]}')
            a(f's_cbranch_vccnz {K}')
            if light_sleep: a(f's_sleep {light_sleep}')
            a('s_add_u32 s20, s20, 1'); a(f's_cmp_lt_u32 s20, {MAXIT}'); a(f's_cbranch_scc1 {L}')
            a(f'{K}:')
            a('s_and_b32 s20, s20, 0xfffffff0')
        L = a.label('hv'); K = a.label('hvok')
        a(f'{L}:')
        b = selbase(sL, local)
        issue(loads, b)
        allr = [d + i for (d, n, _, _) in loads for i in range(n)]
        for (ld, sb) in (extra or []):
            issue(ld, sb); allr += [d + i for (d, n, _, _) in ld for i in range(n)]
        a('s_waitcnt vmcnt(0)')
        if check: check()
        else:
            r = maxchain(allr, t)
            a(f'v_cmp_eq_u32 vcc, -1, v{r}')
        a(f's_cbranch_vccz {K}')
        a('s_add_u32 s20, s20, 1'); a(f's_cmp_lt_u32 s20, {MAXIT}'); a(f's_cbranch_scc1 {L}')
        a(f'{K}:')
    TR = 4; ROWSEL = 8; CHK = 9; VDMA = 10; VO = 11; VL16 = 12; VL2 = 13
    SLO = 24; SHI = 28; ACC = 32; FR = 64; LD = 128
    def dma_tile(srd_, stride, sOff):
        a(f'v_mul_u32_u24 v{VDMA}, {stride}, v{ROWSEL}'); a(f'v_add_u32 v{VDMA}, v{VDMA}, v{CHK}')
        a('s_mov_b32 m0, s23')
        prev = 0
        for s in range(4):
            for u in range(2):
                for Pp in range(2):
                    ro = (32 * s + 16 * Pp + 4 * u) * stride
                    if ro != prev:
                        a(f's_add_u32 {sOff}, {sOff}, {(ro - prev) & 0xffffffff}'); prev = ro
                    a(f'buffer_load_dwordx4 v{VDMA}, {srd_}, {sOff} offen nt lds')
                    if (s, u, Pp) != (3, 1, 1): a('s_add_u32 m0, m0, 1024')
    def tr_tile():
        for s in range(4):
            a(f's_waitcnt vmcnt({12 - 4 * s})')
            for u in range(2):
                for c in range(4):
                    r = FR + (c * 4 + s) * 4 + 2 * u
                    a(f'ds_read_b64_tr_b16 v[{r}:{r+1}], v{TR+c} offset:{(2*s+u)*2048}')
        a('s_waitcnt lgkmcnt(0)')
    def fold_tiles(r):
        a(f'v_permlane32_swap_b32 v{r[0]}, v{r[2]}'); a(f'v_permlane32_swap_b32 v{r[1]}, v{r[3]}')
        a(f'v_add_f32 v{r[0]}, v{r[0]}, v{r[2]}'); a(f'v_add_f32 v{r[1]}, v{r[1]}, v{r[3]}')
        a(f'v_permlane16_swap_b32 v{r[0]}, v{r[1]}')
        a(f'v_add_f32 v{r[0]}, v{r[0]}, v{r[1]}')
    def rowsum(acc):
        for c in range(4): a(f'v_add_f32 v{acc+4*c}, v{acc+4*c}, v{acc+4*c+1}')
        for c in range(4): a(f'v_add_f32 v{acc+4*c+2}, v{acc+4*c+2}, v{acc+4*c+3}')
        for c in range(4): a(f'v_add_f32 v{acc+4*c}, v{acc+4*c}, v{acc+4*c+2}')
        fold_tiles([acc, acc + 4, acc + 8, acc + 12])
    def sel_tile(dst, acc, reg):
        a(f'v_cndmask_b32 v{dst}, v{acc+reg}, v{acc+4+reg}, s[36:37]')
        a(f'v_cndmask_b32 v{dst}, v{dst}, v{acc+8+reg}, s[38:39]')
        a(f'v_cndmask_b32 v{dst}, v{dst}, v{acc+12+reg}, s[34:35]')
    def masks(M, t, hi=False, val=None):
        a(f'v_and_b32 v{t}, 1, v1'); a(f'v_lshlrev_b32 v{t}, 4, v{t}')
        a(f'v_mov_b32 v{t+1}, {0xffff if val is None else val}'); a(f'v_lshlrev_b32 v{t}, v{t}, v{t+1}')
        a(f'v_lshrrev_b32 v{t+1}, 1, v1')
        for d in range(4):
            a(f'v_cmp_eq_u32 vcc, {d + (4 if hi else 0)}, v{t+1}')
            a(f'v_cndmask_b32 v{M+d}, 0, v{t}, vcc')
    def store2(txt, sL):
        a(txt.format(B=sL) )
        a(f's_add_u32 s22, {sL}, {GOFF}')
        a(txt.format(B='s22') + ' sc1')
    def get_tag():
        a('s_waitcnt lgkmcnt(0)')
        a(f's_mul_i32 {sTAG}, {sTAG}, 1664525'); a(f's_add_u32 {sTAG}, {sTAG}, 1013904223')

    stamp(0)
    a('s_cmp_ge_u32 s2, 256'); a('s_cbranch_scc1 L_end')
    a('s_load_dwordx16 s[64:79], s[0:1], 0')
    a('s_load_dwordx8 s[80:87], s[0:1], 64')
    a('s_load_dwordx2 s[88:89], s[0:1], 96')
    a('v_lshrrev_b32 v1, 6, v0')
    a(f'v_readfirstlane_b32 {sW}, v1')
    a('v_and_b32 v0, 63, v0')
    a('v_and_b32 v1, 15, v0'); a('v_lshrrev_b32 v2, 4, v0')
    a(f's_and_b32 {sX}, s2, 7'); a(f's_lshr_b32 {sM}, s2, 3')
    if diag:
        for k in range(1, 12): a(f's_mov_b32 s{40+2*k}, 0')
    a(f's_mul_i32 s24, {sX}, {LOCX}'); a(f's_add_u32 s24, s24, {LOC}')
    a(f's_cmp_ge_u32 {sW}, 4')
    a('s_cbranch_scc1 L_aux')
    a('v_lshrrev_b32 v3, 3, v0')
    a(f'v_lshrrev_b32 v{ROWSEL}, 2, v3'); a(f'v_lshlrev_b32 v{ROWSEL}, 3, v{ROWSEL}')
    a(f'v_and_or_b32 v{ROWSEL}, v3, 3, v{ROWSEL}')
    a('v_and_b32 v14, 6, v3')
    a(f'v_and_b32 v{CHK}, 7, v0'); a(f'v_xor_b32 v{CHK}, v{CHK}, v14'); a(f'v_lshlrev_b32 v{CHK}, 4, v{CHK}')
    a(f's_lshl_b32 s23, {sW}, 14')
    a(f's_cmp_ge_u32 {sM}, 16')
    a('s_cbranch_scc1 L_B')

    def tile_setup2():
        a('v_bfe_u32 v14, v0, 2, 3')
        a('v_lshrrev_b32 v15, 5, v0'); a('v_lshlrev_b32 v15, 10, v15')
        a('v_lshl_add_u32 v15, v14, 7, v15')
        a('v_and_b32 v16, 3, v0'); a('v_lshl_add_u32 v15, v16, 3, v15')
        a('v_add_u32 v15, s23, v15')
        a('v_lshrrev_b32 v14, 1, v14')
        for c in range(4):
            a(f'v_xor_b32 v16, {c}, v14'); a(f'v_lshl_add_u32 v{TR+c}, v16, 5, v15')
        a(f'v_lshlrev_b32 v{VO}, 8, v1'); a(f'v_lshl_add_u32 v{VO}, v2, 4, v{VO}')
        a(f'v_lshlrev_b32 v{VL16}, 4, v0'); a(f'v_lshlrev_b32 v{VL2}, 1, v0')
        masks(SLO, 14, val=0x3f80)
        a('v_cmp_eq_u32 s[36:37], 1, v2'); a('v_cmp_eq_u32 s[38:39], 2, v2'); a('v_cmp_eq_u32 s[34:35], 3, v2')

    a('s_waitcnt lgkmcnt(0)')
    a(f's_load_dword {sTAG}, s[88:89], {EPOCH}')
    srd('wq', 12)
    a(f's_lshl_b32 s25, {sX}, 20'); a(f's_lshl_b32 s26, {sM}, 9'); a('s_add_u32 s25, s25, s26')
    a(f's_lshl_b32 s27, {sW}, 7'); a('s_add_u32 s25, s25, s27')
    dma_tile(WT, 8192, 's25')
    srd('ws', 8)
    tile_setup2()
    a('v_lshlrev_b32 v17, 9, v1'); a('v_lshl_add_u32 v17, v2, 5, v17')
    a(f's_lshl_b32 s28, {sX}, 13'); a(f's_add_u32 s29, s28, {Q}'); a(f's_add_u32 s28, s28, {E1L}')
    a('s_add_u32 s29, s29, s26'); a('s_add_u32 s29, s29, s27')
    a(f's_mov_b32 s30, {FLAGS}')
    get_tag()
    tr_tile()
    stamp(1)
    def chk_e1():
        tg = [LD + 8 * s + 1 for s in range(4)] + [LD + 8 * s + 6 for s in range(4)] + [LD + 32 + i for i in range(4)]
        for i in range(6): a(f'v_bitop3_b32 v{18+i}, v{tg[2*i]}, v{tg[2*i+1]}, {sTAG} bitop3:0x7e')
        a('v_or3_b32 v18, v18, v19, v20'); a('v_or3_b32 v21, v21, v22, v23'); a('v_or_b32 v18, v18, v21')
        a('v_cmp_ne_u32 vcc, 0, v18')
    poll([(LD + 8 * s + 4 * g, 4, 17, s * 128 + g * 16) for s in range(4) for g in range(2)], 's28', E1G - E1L, 18, light=False,
         extra=[([(LD + 32, 4, VL16, 0)], 's30')], check=chk_e1)
    stamp(2)
    for s in range(4):
        for c in range(4): mfma(ACC + 4 * c, LD + 8 * s + 2, FR + (c * 4 + s) * 4, '0' if s == 0 else None)
    rowsum(ACC)
    a(f'v_cvt_pk_bf16_f32 v18, v{ACC}, v{ACC}')
    a(f'buffer_store_short v18, v{VL2}, {WS}, s29 offen sc1')
    stamp(3)
    a('s_barrier')
    srd('wo', 12)
    a(f's_lshr_b32 s26, {sW}, 1'); a(f's_lshl_b32 s27, {sM}, 1'); a('s_add_u32 s26, s26, s27')
    a(f's_and_b32 s27, {sW}, 1'); a('s_lshl_b32 s27, s27, 7')
    a(f's_lshl_b32 s31, {sX}, 8'); a('s_add_u32 s31, s31, s27')
    a('s_lshl_b32 s25, s26, 18'); a('s_add_u32 s25, s25, s31')
    a('s_mov_b32 s33, s25')
    dma_tile(WT, 2048, 's25')
    a('v_lshlrev_b32 v17, 2, v0')
    a('v_bfe_u32 v14, v1, 2, 1'); a('v_lshlrev_b32 v14, 4, v14'); a('v_lshl_add_u32 v14, v2, 2, v14')
    a('v_and_or_b32 v14, v1, 3, v14'); a('v_lshlrev_b32 v16, 9, v14')
    a(f's_lshl_b32 s28, s27, 1'); a('s_add_u32 s28, s28, s24'); a(f's_add_u32 s28, s28, {MODV_O}')
    a(f's_lshl_b32 s29, s26, 13'); a(f's_add_u32 s29, s29, {O}')
    a('s_lshr_b32 s30, s26, 3'); a('s_lshl_b32 s30, s30, 14'); a('s_bfe_u32 s32, s26, 0x20001'); a('s_lshl_b32 s32, s32, 7')
    a('s_add_u32 s30, s30, s32'); a('s_and_b32 s32, s26, 1'); a('s_lshl_b32 s32, s32, 2'); a('s_add_u32 s30, s30, s32')
    a(f's_add_u32 s30, s30, {LAM}')
    a('s_lshl_b32 s32, s26, 8'); a('s_add_u32 s32, s32, s27'); a('s_add_u32 s32, s32, s24')
    tr_tile()
    stamp(4)
    poll([(22, 1, 17, 0), (23, 1, 17, 512)], 's28', True, 18, light=False)
    a('s_cmp_eq_u32 s26, 0'); a('s_cselect_b32 s28, 1.0, 0'); a('v_mul_f32 v23, s28, v23')
    stamp(5)
    poll([(LD + 16 * b + 4 * s, 4, VO, b * 4096 + s * 64) for b in range(2) for s in range(4)], 's29', False, 18,
         extra=[([(21, 1, 16, 0)], 's30')])
    stamp(6)
    for b in range(2):
        for s in range(4):
            for c in range(4): mfma(ACC + 16 * b + 4 * c, LD + 16 * b + 4 * s, FR + (c * 4 + s) * 4, '0' if s == 0 else None)
    a('v_mov_b32 v18, v21')
    allred_dpp('v_max_f32', [18], 3); allred_rows('v_max_f32', 18, 19)
    a('v_sub_f32 v21, v21, v18'); a('v_exp_f32 v21, v21'); a('v_mov_b32 v18, v21')
    allred_dpp('v_add_f32', [18], 3); allred_rows('v_add_f32', 18, 19)
    a('v_rcp_f32 v18, v18'); a('v_mul_f32 v21, v21, v18')
    R = [LD, LD + 1, LD + 2, LD + 3]
    for b in range(2):
        for r in range(4):
            for c in range(4):
                op = 'v_mul_f32_dpp' if (b, r) == (0, 0) else 'v_fmac_f32_dpp'
                a(f'{op} v{R[c]}, v21, v{ACC+16*b+4*c+r} row_newbcast:{4*b+r} {DPP}')
    fold_tiles(R)
    a(f'v_fma_f32 v18, v{R[0]}, v22, v23')
    a(f'v_cvt_pk_bf16_f32 v18, v18, v{R[0]}')
    a(f's_add_u32 s28, s32, {E4_O}'); a(f's_add_u32 s29, s32, {E4_O + 8192}')
    a(f'buffer_store_short v18, v{VL2}, {WS}, s28 offen')
    a(f'buffer_store_short_d16_hi v18, v{VL2}, {WS}, s29 offen')
    a(f's_add_u32 s28, s28, {GOFF}'); a(f's_add_u32 s29, s29, {GOFF}')
    a(f'buffer_store_short v18, v{VL2}, {WS}, s28 offen sc1')
    a(f'buffer_store_short_d16_hi v18, v{VL2}, {WS}, s29 offen sc1')
    stamp(7)
    a(f's_cmp_ge_u32 {sM}, 14'); a('s_cbranch_scc1 L_fin')
    srd('w2', 12)
    dma_tile(WT, 2048, 's33')
    a('v_mul_u32_u24 v17, 7168, v2'); a('v_lshl_add_u32 v17, v1, 4, v17')
    a('v_and_b32 v16, 7, v0'); a('v_lshlrev_b32 v16, 7, v16')
    a(f's_lshl_b32 s29, s26, 8'); a(f's_add_u32 s29, s29, {H}')
    a(f's_mov_b32 s30, {STAT}')
    a('v_and_b32 v15, 1, v2'); a('v_lshlrev_b32 v15, 3, v15'); a('v_lshl_add_u32 v15, v1, 4, v15'); a('v_add_u32 v15, s23, v15')
    a('v_lshlrev_b32 v14, 4, v2'); a('v_add_u32 v14, s23, v14')
    a(f's_add_u32 s32, s32, {E6_O}')
    a('s_waitcnt vmcnt(16)')
    tr_tile()
    stamp(8)
    poll([(LD + 8 * vec + 4 * u, 4, 17, (8 * vec + 4 * u) * 7168) for vec in range(3) for u in range(2)], 's29', False, 18,
         extra=[([(20, 2, 16, 0)], 's30')])
    stamp(9)
    for u in range(2):
        for vec in range(3): mfma(ACC + 4 * vec, SLO, LD + 8 * vec + 4 * u, '0' if u == 0 else None)
    allred_dpp('v_add_f32', [20, 21], 3)
    a(f'v_mul_f32 v20, {f2u(1/1024):#x}, v20'); a(f'v_mul_f32 v21, {f2u(1/1024):#x}, v21')
    a('v_fma_f32 v21, -v20, v20, v21'); a('v_max_f32 v21, 0, v21'); a(f'v_add_f32 v21, {f2u(1e-5):#x}, v21'); a('v_rsq_f32 v21, v21')
    for r in range(4): a(f'v_fma_f32 v{ACC+r}, -v20, v{ACC+4+r}, v{ACC+r}')
    for r in range(4): a(f'v_fma_f32 v{ACC+r}, v{ACC+r}, v21, v{ACC+8+r}')
    for r in range(4): a(f'v_mul_f32 v{ACC+4+r}, {f2u(-LOG2E):#x}, v{ACC+r}')
    for r in range(4): a(f'v_exp_f32 v{ACC+4+r}, v{ACC+4+r}')
    for r in range(4): a(f'v_add_f32 v{ACC+4+r}, 1.0, v{ACC+4+r}')
    for r in range(4): a(f'v_rcp_f32 v{ACC+4+r}, v{ACC+4+r}')
    for r in range(4): a(f'v_mul_f32 v{ACC+r}, v{ACC+r}, v{ACC+4+r}')
    a(f'v_cvt_pk_bf16_f32 v18, v{ACC}, v{ACC+1}'); a(f'v_cvt_pk_bf16_f32 v19, v{ACC+2}, v{ACC+3}')
    a('s_mov_b32 exec_hi, 0')
    a('ds_write_b64 v15, v[18:19]')
    a('s_mov_b64 exec, -1')
    for s in range(4): a(f'ds_read_b128 {vr(LD + 4 * s)}, v14 offset:{64 * s}')
    for s in range(4):
        a(f's_waitcnt lgkmcnt({0 if diag else 3 - s})')
        for c in range(4): mfma(ACC + 16 + 4 * c, LD + 4 * s, FR + (c * 4 + s) * 4, '0' if s == 0 else None)
    sel_tile(18, ACC + 16, 0)
    a('v_cvt_pk_bf16_f32 v18, v18, v18')
    store2(f'buffer_store_short v18, v{VL2}, {WS}, {{B}} offen', 's32')
    stamp(10)
    a('s_branch L_fin')

    a('L_B:')
    a(f's_sub_u32 {sM}, {sM}, 16')
    a(f's_lshr_b32 s26, {sX}, 1')
    a(f's_and_b32 s27, {sX}, 1'); a('s_lshl_b32 s27, s27, 4'); a(f's_add_u32 s27, s27, {sM}')
    a('s_lshl_b32 s25, s26, 24'); a('s_lshl_b32 s28, s27, 15'); a('s_add_u32 s25, s25, s28')
    a(f's_lshl_b32 s28, {sW}, 13'); a('s_add_u32 s25, s25, s28'); a(f's_add_u32 s25, s25, {61440 * 256}')
    tile_setup2()
    a(f'v_lshl_add_u32 v{VDMA}, v3, 8, v{CHK}')
    a('s_waitcnt lgkmcnt(0)')
    a(f's_load_dword {sTAG}, s[88:89], {EPOCH}')
    srd('k', 12); srd('v', 16); srd('ws', 8)
    if kv_wait: a('s_barrier')
    KF = FR + 32
    a('s_add_u32 s28, s25, 4096')
    for t in range(2):
        for s in range(4):
            a(f'buffer_load_dwordx4 {vr(KF + 16 * t + 4 * s)}, v{VO}, {WT}, {"s25" if t == 0 else "s28"} offen offset:{64 * s} nt')
    a('s_mov_b32 m0, s23')
    prev = 0
    for ch in range(2):
        for u in range(2):
            for Pp in range(2):
                ro = (16 * u + 8 * Pp) * 256 + ch * 128
                if ro != prev: a(f's_add_u32 s25, s25, {(ro - prev) & 0xffffffff}'); prev = ro
                a(f'buffer_load_dwordx4 v{VDMA}, {WT2}, s25 offen nt lds')
                a('s_add_u32 m0, m0, 1024')
    masks(SHI, 14, hi=True, val=0x3f80)
    a('v_lshlrev_b32 v17, 13, v2'); a('v_lshl_add_u32 v17, v1, 4, v17')
    a(f's_lshl_b32 s29, s26, 11'); a(f's_lshl_b32 s28, {sW}, 9'); a('s_add_u32 s29, s29, s28'); a(f's_add_u32 s29, s29, {Q}')
    a('v_lshrrev_b32 v15, 1, v2'); a(f's_lshl_b32 s28, {sW}, 1'); a('v_add_u32 v15, s28, v15'); a(f'v_mul_u32_u24 v15, {QLS}, v15')
    a('v_lshl_add_u32 v15, v1, 4, v15'); a('v_and_b32 v16, 1, v2'); a('v_lshl_add_u32 v15, v16, 3, v15'); a(f'v_add_u32 v15, {QL}, v15')
    a('v_and_b32 v16, 7, v1'); a(f'v_mul_u32_u24 v14, {QLS}, v16'); a('v_lshl_add_u32 v14, v2, 4, v14'); a(f'v_add_u32 v14, {QL}, v14')
    a(f's_mul_i32 s28, {sW}, {8 * OWS}'); a(f's_add_u32 s28, s28, {OW}')
    a(f'v_mul_u32_u24 v160, {OWS}, v16'); a('v_lshl_add_u32 v160, v2, 4, v160'); a('v_add_u32 v160, s28, v160')
    a(f's_lshl_b32 s28, {sW}, 3'); a(f's_add_u32 s28, s28, {ML}'); a('v_lshlrev_b32 v161, 5, v16'); a('v_add_u32 v161, s28, v161')
    a('v_lshrrev_b32 v163, 5, v0'); a(f's_lshl_b32 s28, {sW}, 1'); a('v_add_u32 v163, s28, v163')
    a(f'v_mul_u32_u24 v162, {OWS}, v163'); a('v_and_b32 v16, 31, v0'); a('v_lshl_add_u32 v162, v16, 4, v162'); a(f'v_add_u32 v162, {OW}, v162')
    a('v_lshlrev_b32 v164, 13, v163'); a('v_lshl_add_u32 v164, v16, 3, v164')
    a(f'v_lshlrev_b32 v163, 5, v163'); a(f'v_add_u32 v163, {ML}, v163')
    a('v_lshrrev_b32 v165, 3, v0')
    a(f's_lshl_b32 s30, s26, 16'); a('s_lshl_b32 s28, s27, 8'); a('s_add_u32 s30, s30, s28'); a(f's_add_u32 s30, s30, {O}')
    a(f's_lshl_b32 s31, s26, 14'); a('s_lshl_b32 s28, s27, 9'); a('s_add_u32 s31, s31, s28'); a(f's_lshl_b32 s28, {sW}, 7')
    a('s_add_u32 s31, s31, s28'); a(f's_add_u32 s31, s31, {LAM}')
    a(f's_mov_b32 s32, {f2u(128 ** -0.5 * LOG2E):#x}')
    get_tag()
    a('s_waitcnt vmcnt(0)')
    for ch in range(2):
        for u in range(2):
            for c in range(4):
                r = FR + (4 * ch + c) * 4 + 2 * u
                a(f'ds_read_b64_tr_b16 v[{r}:{r+1}], v{TR+c} offset:{(2*ch+u)*2048}')
    a('s_waitcnt lgkmcnt(0)')
    stamp(1)
    a('s_barrier')
    stamp(2)
    poll([(LD + 8 * u + 4 * hs, 4, 17, u * 32768 + hs * 256) for u in range(2) for hs in range(2)], 's29', False, 18)
    stamp(3)
    mfma(ACC, SLO, LD, '0'); mfma(ACC, SHI, LD + 4); mfma(ACC, SLO, LD + 8); mfma(ACC, SHI, LD + 12)
    a(f'v_cvt_pk_bf16_f32 v18, v{ACC}, v{ACC+1}'); a(f'v_cvt_pk_bf16_f32 v19, v{ACC+2}, v{ACC+3}')
    a('ds_write_b64 v15, v[18:19]')
    a('s_waitcnt lgkmcnt(0)')
    a('s_barrier')
    for s in range(4): a(f'ds_read_b128 {vr(LD + 4 * s)}, v14 offset:{64 * s}')
    for s in range(4):
        a(f's_waitcnt lgkmcnt({0 if diag else 3 - s})')
        for t in range(2): mfma(ACC + 4 * t, KF + 16 * t + 4 * s, LD + 4 * s, '0' if s == 0 else None)
    a(f'v_max3_f32 v18, v{ACC}, v{ACC+1}, v{ACC+2}'); a(f'v_max3_f32 v19, v{ACC+4}, v{ACC+5}, v{ACC+6}')
    a(f'v_max3_f32 v18, v18, v{ACC+3}, v{ACC+7}'); a('v_max_f32 v18, v18, v19')
    allred_rows('v_max_f32', 18, 19)
    a('v_mul_f32 v18, s32, v18')
    for r in range(8): a(f'v_fma_f32 v{ACC+r}, v{ACC+r}, s32, -v18')
    for r in range(8): a(f'v_exp_f32 v{ACC+r}, v{ACC+r}')
    for r in range(4): a(f'v_cvt_pk_bf16_f32 v{20+r}, v{ACC+2*r}, v{ACC+2*r+1}')
    for T in range(8): mfma(LD + 4 * T, FR + 4 * T, 20, '0')
    for r in range(4): a(f'v_add_f32 v{ACC+r}, v{ACC+r}, v{ACC+4+r}')
    a(f'v_add_f32 v{ACC}, v{ACC}, v{ACC+1}'); a(f'v_add_f32 v{ACC+2}, v{ACC+2}, v{ACC+3}'); a(f'v_add_f32 v19, v{ACC}, v{ACC+2}')
    allred_rows('v_add_f32', 19, ACC)
    a('s_mov_b32 exec_lo, 0x00ff00ff'); a('s_mov_b32 exec_hi, 0x00ff00ff')
    a('ds_write_b64 v161, v[18:19]')
    for T in range(8): a(f'ds_write_b128 v160, {vr(LD + 4 * T)} offset:{64 * T}')
    a('s_mov_b64 exec, -1')
    a('s_waitcnt lgkmcnt(0)')
    a('s_barrier')
    a(f'ds_read_b128 {vr(ACC)}, v163'); a(f'ds_read_b128 {vr(ACC+4)}, v163 offset:16')
    for w in range(4): a(f'ds_read_b128 {vr(LD + 4 * w)}, v162 offset:{w * 8 * OWS}')
    a(f's_waitcnt lgkmcnt({0 if diag else 4})')
    a(f'v_max3_f32 v18, v{ACC}, v{ACC+2}, v{ACC+4}'); a(f'v_max_f32 v18, v18, v{ACC+6}')
    for w in range(4): a(f'v_sub_f32 v{ACC+2*w}, v{ACC+2*w}, v18')
    for w in range(4): a(f'v_exp_f32 v{ACC+2*w}, v{ACC+2*w}')
    a(f'v_mul_f32 v19, v{ACC}, v{ACC+1}')
    for w in range(1, 4): a(f'v_fmac_f32 v19, v{ACC+2*w}, v{ACC+2*w+1}')
    a('v_rcp_f32 v20, v19'); a('v_log_f32 v21, v19')
    a('s_waitcnt lgkmcnt(0)')
    for r in range(4): a(f'v_mul_f32 v{LD+r}, v{LD+r}, v{ACC}')
    for w in range(1, 4):
        for r in range(4): a(f'v_fmac_f32 v{LD+r}, v{LD+4*w+r}, v{ACC+2*w}')
    for r in range(4): a(f'v_mul_f32 v{LD+r}, v{LD+r}, v20')
    a(f'v_cvt_pk_bf16_f32 v22, v{LD}, v{LD+1}'); a(f'v_cvt_pk_bf16_f32 v23, v{LD+2}, v{LD+3}')
    a(f'buffer_store_dwordx2 v[22:23], v164, {WS}, s30 offen sc1')
    a('v_add_f32 v21, v21, v18')
    a('s_mov_b32 exec_lo, 1'); a('s_mov_b32 exec_hi, 1')
    a(f'buffer_store_dword v21, v165, {WS}, s31 offen sc1')
    a('s_mov_b64 exec, -1')
    stamp(4)
    a(f's_cmp_ge_u32 {sM}, 14'); a('s_cbranch_scc1 L_F')
    srd('w1', 12)
    a(f's_mul_i32 s25, {sX}, {128 * 7168}'); a(f's_lshl_b32 s26, {sM}, 9'); a(f's_lshl_b32 s27, {sW}, 7'); a('s_add_u32 s26, s26, s27')
    a('s_add_u32 s25, s25, s26')
    dma_tile(WT, 7168, 's25')
    a('v_and_b32 v17, 1, v1'); a('v_lshlrev_b32 v17, 8, v17'); a('v_lshl_add_u32 v17, v2, 4, v17')
    a(f's_add_u32 s28, s24, {MODV_O + 1024}'); a(f's_add_u32 s29, s24, {E4_O}')
    a(f's_mul_i32 s30, {sX}, 7168'); a('s_add_u32 s30, s30, s26'); a(f's_add_u32 s30, s30, {H}')
    a(f's_add_u32 s31, s30, {8 * 7168}'); a(f's_add_u32 s32, s30, {16 * 7168}')
    a('s_waitcnt vmcnt(16)')
    tr_tile()
    stamp(5)
    poll([(LD + 4 * s, 4, 17, s * 64) for s in range(4)], 's28', True, 18, light=False)
    for s in range(4):
        for c in range(4): mfma(ACC + 4 * c, LD + 4 * s, FR + (c * 4 + s) * 4, '0' if s == 0 else None)
    sel_tile(18, ACC, 0); sel_tile(19, ACC, 1)
    a('v_cvt_pk_bf16_f32 v18, v18, v19')
    a(f'buffer_store_short v18, v{VL2}, {WS}, s31 offen sc1')
    a(f'buffer_store_short_d16_hi v18, v{VL2}, {WS}, s32 offen sc1')
    stamp(6)
    poll([(LD + 16 * b + 4 * s, 4, VO, b * 4096 + s * 64) for b in range(2) for s in range(4)], 's29', True, 19)
    stamp(7)
    for b in range(2):
        for s in range(4):
            for c in range(4): mfma(ACC + 4 * c, LD + 16 * b + 4 * s, FR + (c * 4 + s) * 4, '0' if (b, s) == (0, 0) else None)
    rowsum(ACC)
    a(f'v_cvt_pk_bf16_f32 v18, v{ACC}, v{ACC}')
    a(f'buffer_store_short v18, v{VL2}, {WS}, s30 offen sc1')
    stamp(8)
    a('s_branch L_fin')
    a('L_F:')
    a(f's_cmp_lg_u32 {sM}, 14'); a('s_cbranch_scc1 L_fin')
    a(f's_cmp_lg_u32 {sW}, 0'); a('s_cbranch_scc1 L_fin')
    a('v_and_b32 v17, 1, v2'); a('v_lshlrev_b32 v17, 3, v17'); a('v_lshl_add_u32 v17, v1, 4, v17')
    a(f's_lshl_b32 s25, {sX}, 8'); a('v_add_u32 v16, s25, v17')
    a(f'global_load_dwordx2 v[14:15], v16, s[{P["x"]}:{P["x"]+1}]')
    srd('out', 12)
    poll([(FR + 4 * i, 4, VL16, i * 1024) for i in range(16)], 's24', True, 18)
    stamp(5)
    for u in range(4):
        for blk in range(4): mfma(ACC + 4 * blk, SLO, FR + 16 * blk + 4 * u, '0' if u == 0 else None)
    GA, SB, CB, GB = ACC, ACC + 4, ACC + 8, ACC + 12
    X = ACC + 16; G2 = ACC + 20; XC = ACC + 24
    a(f'v_lshlrev_b32 v{X}, 16, v14'); a(f'v_and_b32 v{X+1}, 0xffff0000, v14'); a(f'v_lshlrev_b32 v{X+2}, 16, v15'); a(f'v_and_b32 v{X+3}, 0xffff0000, v15')
    for r in range(4): a(f'v_add_f32 v{CB+r}, 1.0, v{CB+r}')
    for r in range(4): a(f'v_mul_f32 v{G2+r}, v{GA+r}, v{CB+r}')
    for r in range(4): a(f'v_mul_f32 v{XC+r}, v{X+r}, v{CB+r}')
    a(f'v_cvt_pk_bf16_f32 v18, v{CB}, v{CB+1}'); a(f'v_cvt_pk_bf16_f32 v19, v{CB+2}, v{CB+3}')
    a(f'v_cvt_pk_bf16_f32 v20, v{SB}, v{SB+1}'); a(f'v_cvt_pk_bf16_f32 v21, v{SB+2}, v{SB+3}')
    a('v_lshlrev_b32 v22, 1, v17')
    a(f's_add_u32 s28, s24, {MODV_O}'); a(f's_add_u32 s29, s28, {GOFF}')
    a('s_mov_b32 exec_hi, 0')
    for (sb, fl) in (('s28', ''), ('s29', ' sc1')):
        a(f'buffer_store_dwordx4 {vr(G2)}, v22, {WS}, {sb} offen{fl}')
        a(f'buffer_store_dwordx4 {vr(XC)}, v22, {WS}, {sb} offen offset:512{fl}')
        a(f'buffer_store_dwordx2 v[18:19], v17, {WS}, {sb} offen offset:1024{fl}')
        a(f'buffer_store_dwordx2 v[20:21], v17, {WS}, {sb} offen offset:1280{fl}')
    a('s_mov_b64 exec, -1')
    stamp(6)
    a(f's_add_u32 s28, s24, {E4_O + 8192}')
    a(f's_lshl_b32 s29, {sX}, 7'); a(f's_add_u32 s29, s29, {STAT}'); a('v_mov_b32 v23, 0')
    poll([(LD + 4 * i, 4, VL16, i * 1024) for i in range(8)], 's28', True, 22)
    stamp(7)
    for u in range(8): mfma(SB, SLO, LD + 4 * u, '0' if u == 0 else None)
    for r in range(4): a(f'v_fmac_f32 v{X+r}, v{GA+r}, v{SB+r}')
    a(f'v_add_f32 v18, v{X}, v{X+1}'); a(f'v_mul_f32 v19, v{X}, v{X}'); a(f'v_add_f32 v20, v{X+2}, v{X+3}')
    for r in range(1, 4): a(f'v_fmac_f32 v19, v{X+r}, v{X+r}')
    a('v_add_f32 v18, v18, v20')
    allred_dpp('v_add_f32', [18, 19], 4)
    a('v_mov_b32 v20, v18'); a('v_mov_b32 v21, v19')
    a('v_permlane16_swap_b32 v18, v20'); a('v_permlane16_swap_b32 v19, v21')
    a('v_add_f32 v18, v18, v20'); a('v_add_f32 v19, v19, v21')
    a('s_mov_b64 exec, 1')
    a(f'buffer_store_dwordx2 v[18:19], v23, {WS}, s29 offen sc1')
    a('s_mov_b64 exec, -1')
    stamp(8)
    a(f's_add_u32 s28, s24, {E6_O}')
    poll([(LD + 4 * i, 4, VL16, i * 1024) for i in range(7)], 's28', True, 22)
    stamp(9)
    for u in range(7): mfma(SB, SLO, LD + 4 * u, '0' if u == 0 else None)
    for r in range(4): a(f'v_fmac_f32 v{X+r}, v{GB+r}, v{SB+r}')
    a(f'v_cvt_pk_bf16_f32 v18, v{X}, v{X+1}'); a(f'v_cvt_pk_bf16_f32 v19, v{X+2}, v{X+3}')
    a('s_mov_b32 exec_hi, 0')
    a(f'buffer_store_dwordx2 v[18:19], v16, {WT}, 0 offen')
    a(f's_cmp_lg_u32 {sX}, 0'); a('s_cbranch_scc1 L_Fdone')
    a('s_mov_b64 exec, 1')
    a(f'v_mov_b32 v20, {sTAG}')
    a(f'buffer_store_dword v20, v23, {WS}, 0 offen offset:{EPOCH}')
    a('L_Fdone:')
    a('s_mov_b64 exec, -1')
    stamp(10)
    a('s_branch L_fin')

    WL = 64; FG = 128; MK = 24
    def silu_frags():
        a('v_lshlrev_b32 v20, 16, v20')
        a(f'v_mul_f32 v21, {f2u(-LOG2E):#x}, v20'); a('v_exp_f32 v21, v21'); a('v_add_f32 v21, 1.0, v21'); a('v_rcp_f32 v21, v21')
        a('v_mul_f32 v20, v20, v21'); a('v_cvt_pk_bf16_f32 v20, v20, v20')
        for st in range(16):
            for d in range(4): a(f'v_and_b32_dpp v{FG+4*st+d}, v20, v{MK+d} row_newbcast:{st} {DPP}')
    a('L_aux:')
    a(f's_and_b32 s25, {sM}, 15')
    a('s_lshl_b32 s26, s25, 7'); a('v_lshlrev_b32 v3, 1, v0'); a('v_add_u32 v3, s26, v3')
    a(f'v_mul_u32_u24 v4, {16 * 12288}, v2')
    a(f's_mul_i32 s26, s25, {64 * 12288}'); a(f's_lshl_b32 s27, {sX}, 8'); a('s_add_u32 s26, s26, s27')
    a(f's_cmp_lg_u32 {sW}, 4'); a('s_cbranch_scc1 L_aux567')
    a('s_setprio 2')
    a(f's_lshr_b32 s28, {sM}, 4'); a('s_lshl_b32 s28, s28, 7')
    a('v_lshrrev_b32 v5, 3, v1'); a('v_lshlrev_b32 v5, 11, v5'); a('v_and_b32 v6, 7, v1'); a('v_lshl_add_u32 v5, v6, 4, v5'); a('v_add_u32 v5, v5, v4')
    a('s_add_u32 s29, s26, s28')
    a('v_lshlrev_b32 v7, 5, v0')
    a('v_and_b32 v8, 1, v2'); a('v_lshlrev_b32 v9, 3, v8'); a('v_lshl_add_u32 v9, v6, 4, v9')
    a('s_add_u32 s27, s27, s28'); a('v_add_u32 v9, s27, v9')
    a('s_waitcnt lgkmcnt(0)')
    a(f'global_load_ushort v20, v3, s[{P["c"]}:{P["c"]+1}]')
    srd('wmod', 12)
    a(f'global_load_dwordx4 v[32:35], v7, s[{P["x"]}:{P["x"]+1}]')
    a(f'global_load_dwordx4 v[36:39], v7, s[{P["x"]}:{P["x"]+1}] offset:16')
    a(f'global_load_dwordx2 v[40:41], v9, s[{P["x"]}:{P["x"]+1}]')
    for st in range(16):
        a(f'buffer_load_dwordx4 {vr(WL + 4 * st)}, v5, {WT}, s29 offen nt')
        if st < 15: a('s_add_u32 s29, s29, 12288')
    a(f's_load_dword {sTAG}, s[88:89], {EPOCH}')
    srd('ws', 8)
    a(f's_lshl_b32 s30, {sX}, 13'); a('s_lshl_b32 s31, s25, 9'); a('s_add_u32 s30, s30, s31'); a('s_lshl_b32 s31, s28, 1'); a('s_add_u32 s30, s30, s31')
    a(f's_add_u32 s31, s30, {E1G}'); a(f's_add_u32 s30, s30, {E1L}')
    a('v_lshlrev_b32 v10, 5, v6'); a('v_lshl_add_u32 v10, v8, 4, v10')
    masks(MK, 14)
    a('v_cmp_eq_u32 s[34:35], 1, v8')
    a('s_cmp_eq_u32 s25, 0'); a('s_cselect_b32 s32, 1.0, 0'); a('v_mov_b32 v12, s32')
    a('s_waitcnt vmcnt(19)')
    silu_frags()
    a('s_waitcnt vmcnt(16)')
    a('v_mov_b32 v44, 0x3f803f80'); a('v_mov_b32 v42, 0'); a('v_mov_b32 v43, 0')
    for i in range(8):
        a(f'v_dot2_f32_bf16 v42, v{32+i}, v44, v42'); a(f'v_dot2_f32_bf16 v43, v{32+i}, v{32+i}, v43')
    a('s_nop 2')
    for st in range(8):
        a(f's_waitcnt vmcnt({15 - st})')
        mfma(48, FG + 4 * st, WL + 4 * st, '0' if st == 0 else None)
    allred_dpp('v_add_f32', [42, 43], 4)
    allred_rows('v_add_f32', 42, 44); allred_rows('v_add_f32', 43, 45)
    a(f'v_mul_f32 v42, {f2u(1/1024):#x}, v42'); a(f'v_mul_f32 v43, {f2u(1/1024):#x}, v43')
    a('v_fma_f32 v43, -v42, v42, v43'); a('v_max_f32 v43, 0, v43'); a(f'v_add_f32 v43, {f2u(1e-5):#x}, v43'); a('v_rsq_f32 v43, v43')
    a('v_lshlrev_b32 v44, 16, v40'); a('v_and_b32 v45, 0xffff0000, v40'); a('v_lshlrev_b32 v46, 16, v41'); a('v_and_b32 v47, 0xffff0000, v41')
    for r in range(4): a(f'v_sub_f32 v{44+r}, v{44+r}, v42')
    for r in range(4): a(f'v_mul_f32 v{44+r}, v{44+r}, v43')
    get_tag()
    a(f'v_mov_b32 v13, {sTAG}')
    for st in range(8, 16):
        a(f's_waitcnt vmcnt({15 - st})')
        mfma(48, FG + 4 * st, WL + 4 * st)
    for r in range(4): a(f'v_add_f32_dpp v{52+r}, v{48+r}, v12 row_ror:8 {DPP}')
    for r in range(4): a(f'v_fmac_f32 v{48+r}, v{44+r}, v{52+r}')
    a('v_cvt_pk_bf16_f32 v52, v48, v49'); a('v_cvt_pk_bf16_f32 v55, v50, v51')
    a('v_cndmask_b32 v53, v13, v55, s[34:35]'); a('v_cndmask_b32 v54, v52, v13, s[34:35]')
    a('s_mov_b64 exec, 0x00ff00ff')
    a(f'buffer_store_dwordx4 v[52:55], v10, {WS}, s30 offen')
    a(f'buffer_store_dwordx4 v[52:55], v10, {WS}, s31 offen sc1')
    a('s_mov_b64 exec, -1')
    a('s_setprio 0')
    stamp(1)
    a(f's_cmp_ge_u32 {sM}, 16'); a('s_cbranch_scc1 L_fin')
    a('s_branch L_modtask')
    a('L_aux567:')
    a(f's_cmp_eq_u32 {sW}, 5'); a('s_cbranch_scc1 L_aux5')
    a(f's_cmp_ge_u32 {sM}, 16'); a('s_cbranch_scc1 L_end')
    a('s_waitcnt lgkmcnt(0)')
    srd('ws', 8)
    a('s_branch L_modprep')
    a('L_aux5:')
    a('v_lshlrev_b32 v7, 4, v0'); a('v_lshlrev_b32 v12, 7, v0')
    a(f's_lshl_b32 s30, {sX}, 13'); a(f's_add_u32 s30, s30, {E1L}')
    for i in range(4): a(f'v_mov_b32 v{32+i}, -1')
    a(f's_mul_i32 s28, s2, 5120'); a(f's_add_u32 s28, s28, {CLR0}'); a('s_add_u32 s29, s28, 4096')
    a('s_waitcnt lgkmcnt(0)')
    a(f's_load_dword {sTAG}, s[88:89], {EPOCH}')
    srd('ws', 8)
    a(f'buffer_load_dword v11, v12, {WS}, s30 offen sc1')
    for i in range(4): a(f'buffer_store_dwordx4 v[32:35], v7, {WS}, s28 offen offset:{1024 * i} sc1')
    a(f'buffer_store_dwordx4 v[32:35], v7, {WS}, s29 offen sc1')
    a(f's_lshl_b32 s28, s2, 2'); a(f's_add_u32 s28, s28, {FLAGS}'); a('v_mov_b32 v8, 0')
    a(f's_mul_i32 s29, {sM}, 11'); a('v_add_u32 v9, s29, v0'); a(f'v_min_u32 v9, {LOCX // 128 - 1}, v9'); a('v_lshlrev_b32 v9, 7, v9')
    get_tag()
    a(f'v_mov_b32 v10, {sTAG}')
    a('s_waitcnt vmcnt(0)')
    a('s_mov_b64 exec, 1')
    a(f'buffer_store_dword v10, v8, {WS}, s28 offen sc1')
    a('s_mov_b64 exec, -1')
    stamp(1)
    if kv_wait:
        a(f's_cmp_lt_u32 {sM}, 16'); a('s_cbranch_scc1 L_a5nb'); a('s_barrier'); a('L_a5nb:')
    a(f's_mov_b32 s30, {FLAGS}')
    def chk_flags():
        a(f'v_bitop3_b32 v18, v32, v33, {sTAG} bitop3:0x7e'); a(f'v_bitop3_b32 v19, v34, v35, {sTAG} bitop3:0x7e')
        a('v_or_b32 v18, v18, v19'); a('v_cmp_ne_u32 vcc, 0, v18'); a('s_sleep 2')
    poll([(32, 4, 7, 0)], 's30', False, 18, light=False, check=chk_flags)
    a(f'buffer_load_dword v11, v9, {WS}, s24 offen sc1')
    stamp(2)
    a(f's_cmp_ge_u32 {sM}, 16'); a('s_cbranch_scc1 L_fin')
    a('L_modprep:')
    a(f'global_load_ushort v20, v3, s[{P["c"]}:{P["c"]+1}]')
    srd('wmod', 12)
    masks(MK, 14)
    a('s_waitcnt vmcnt(0)')
    silu_frags()
    a('L_modtask:')
    a('v_lshl_add_u32 v5, v1, 4, v4')
    a(f's_sub_u32 s27, {sW}, 2'); a('s_lshl_b32 s27, s27, 11'); a('s_add_u32 s26, s26, s27')
    a(f's_sub_u32 s27, {sW}, 4'); a('s_lshl_b32 s27, s27, 12'); a('s_lshl_b32 s28, s25, 8'); a('s_add_u32 s27, s27, s28'); a('s_add_u32 s27, s27, s24')
    a('v_and_b32 v8, 1, v2'); a('v_lshlrev_b32 v8, 3, v8'); a('v_lshl_add_u32 v8, v1, 4, v8')
    a('s_waitcnt vmcnt(0)')
    a('s_barrier')
    for st in range(16):
        a(f'buffer_load_dwordx4 {vr(WL + 4 * st)}, v5, {WT}, s26 offen nt')
        if st < 15: a('s_add_u32 s26, s26, 12288')
    for st in range(16):
        a(f's_waitcnt vmcnt({15 - st})')
        mfma(48, FG + 4 * st, WL + 4 * st, '0' if st == 0 else None)
    a('v_cvt_pk_bf16_f32 v52, v48, v49'); a('v_cvt_pk_bf16_f32 v53, v50, v51')
    a('s_mov_b32 exec_hi, 0')
    store2(f'buffer_store_dwordx2 v[52:53], v8, {WS}, {{B}} offen', 's27')
    a('s_mov_b64 exec, -1')
    stamp(3)

    a('L_fin:')
    if diag:
        a('s_memrealtime s[62:63]')
        a('s_waitcnt lgkmcnt(0)')
        a(f's_lshl_b32 s28, s2, 3'); a(f's_add_u32 s28, s28, {sW}'); a('s_lshl_b32 s28, s28, 6'); a(f's_add_u32 s28, s28, {DBG}')
        a('v_mov_b32 v1, 0'); a('s_mov_b64 exec, 1')
        for k in range(12):
            a(f'v_mov_b32 v2, s{40+2*k}')
            a(f'buffer_store_dword v2, v1, {WS}, s28 offen offset:{4*k}')
        a('v_mov_b32 v2, s20')
        a(f'buffer_store_dword v2, v1, {WS}, s28 offen offset:48')
    a('L_end:')
    a('s_endpgm')
    return wrap(a.text(), 256, 512, LDS_BYTES, 192)

if __name__ == '__main__':
    out = sys.argv[1] if len(sys.argv) > 1 else 'k.s'
    open(out, 'w').write(gen(diag='diag' in sys.argv))
```
